```python
import torch

def _softmax(x, axis=-1):
    return torch.softmax(x, dim=axis)
def _gelu(x):
    return torch.nn.functional.gelu(x, approximate="tanh")
def _silu(x):
    return torch.nn.functional.silu(x)
def _sigmoid(x):
    return torch.sigmoid(x)
def _layernorm(x, axis=-1, eps=1e-5):
    m = x.mean(dim=axis, keepdim=True)
    v = x.var(dim=axis, keepdim=True, unbiased=False)
    return (x - m) / torch.sqrt(v + eps)
def _scatter_add(tgt, idx, src, axis=0):
    return tgt.clone().index_add_(axis, idx, src)
def _segment_sum(src, seg, n):
    out = torch.zeros((n,) + src.shape[1:], dtype=src.dtype)
    return out.index_add_(0, seg, src)
def _pad(x, pw):
    flat = tuple(v for pair in reversed(pw) for v in pair)
    return torch.nn.functional.pad(x, flat)

kernel_name = 'standalone__deep_cross_wide_deep__recsys'

def setup_inputs():

    _w = (lambda a: (lambda t: t.to(torch.bfloat16) if t.is_floating_point() else t)(torch.as_tensor(a)))
    B, F, D = 16384, 26, 128
    V, Nd = min(1000000, 100000), 13
    Din = F * D
    H = 4 * D
    return {
        "idx": _w((lambda lo, hi, *s: torch.randint(lo, hi, s))(0, V, B, F).to(torch.int64)),
        "table": _w((lambda *s: torch.randn(*s, dtype=torch.bfloat16) * 1.6)(V, D) * 0.05),
        "x_wide": _w((lambda *s: torch.randn(*s, dtype=torch.bfloat16) * 1.6)(B, Nd)),
        "w_wide": _w((lambda *s: torch.randn(*s, dtype=torch.bfloat16) * 1.6)(Nd) * 0.05),
        "b_wide": _w((lambda *s: torch.randn(*s, dtype=torch.bfloat16) * 1.6)(1) * 0.01),
        "W1": _w((lambda *s: torch.randn(*s, dtype=torch.bfloat16) * 1.6)(Din, H) * (2.0 / Din) ** 0.5),
        "b1": _w((lambda *s: torch.randn(*s, dtype=torch.bfloat16) * 1.6)(H) * 0.01),
        "W2": _w((lambda *s: torch.randn(*s, dtype=torch.bfloat16) * 1.6)(H) * (1.0 / H) ** 0.5),
        "b2": _w((lambda *s: torch.randn(*s, dtype=torch.bfloat16) * 1.6)(1) * 0.01),
    }

def reference(idx, table, x_wide, w_wide, b_wide, W1, b1, W2, b2):
    emb = table[idx]
    deep_in = emb.reshape(emb.shape[0], -1)
    h = deep_in @ W1 + b1
    h = h * (lambda x, dt: x.to(dt))(h > 0, h.dtype)
    deep_logit = h @ W2 + b2
    wide_logit = x_wide @ w_wide + b_wide
    return _sigmoid(wide_logit + deep_logit)
```

```python
import sys

HEADER = open("standalone__deep_cross_wide_deep__recsys.s.ref").read().split("; Override launch")[0]

KN = "standalone__deep_cross_wide_deep__recsys_kernel"


class Opt:
    prio_cons = 2
    prio_load = 0
    pd = 3
    prefetch = True
    no_mfma = False
    no_dsread = False
    no_dma = False
    read_spread = 1
    a_nt = False


def gen(o):
    L = []
    e = L.append
    ABASE = 0
    BBASE = 65536
    NST = 52
    e("    s_cmp_ge_u32 s2, 256")
    e("    s_cbranch_scc1 L_end")
    e("    s_load_dwordx16 s[16:31], s[0:1], 0")
    e("    s_load_dwordx8 s[32:39], s[0:1], 64")
    e("    v_lshrrev_b32 v1, 6, v0")
    e("    v_and_b32 v0, 63, v0")
    e("    v_readfirstlane_b32 s3, v1")
    e("    s_and_b32 s4, s2, 7")
    e("    s_lshr_b32 s5, s2, 3                ; j = 0..31")
    e("    s_and_b32 s6, s5, 1                 ; nhalf")
    e("    s_lshr_b32 s7, s5, 1")
    e("    s_lshl_b32 s8, s4, 4")
    e("    s_add_u32 s8, s8, s7                ; m tile 0..127")
    e("    s_lshl_b32 s9, s8, 7")
    e("    s_lshl_b32 s10, s6, 9")
    e("    s_waitcnt lgkmcnt(0)")
    e("    s_cmp_lt_u32 s3, 4")
    e("    s_cbranch_scc1 L_cons")
    e("    s_mov_b32 s48, s26                  ; W1 SRD s[48:51]")
    e("    s_and_b32 s49, s27, 0xffff")
    e("    s_mov_b32 s50, %d" % (3328 * 1024))
    e("    s_mov_b32 s51, 0x00020000")
    if o.prio_load:
        e("    s_setprio %d" % o.prio_load)
    e("    s_cmp_lt_u32 s3, 6")
    e("    s_cbranch_scc1 L_aload")

    e("L_bload:")
    e("    s_sub_u32 s11, s3, 6                ; bw")
    e("    v_lshrrev_b32 v1, 4, v0             ; b")
    e("    v_bfe_u32 v2, v0, 2, 2              ; r")
    e("    v_and_b32 v3, 3, v0                 ; q")
    e("    v_lshlrev_b32 v4, 10, v2")
    e("    v_lshl_add_u32 v4, v1, 6, v4")
    e("    v_add_u32 v4, s10, v4")
    e("    v_lshl_add_u32 v5, v3, 4, v4        ; even: q*16")
    e("    v_xor_b32 v3, 2, v3")
    e("    v_lshl_add_u32 v6, v3, 4, v4        ; odd: (q^2)*16")
    e("    s_lshl_b32 s12, s11, 14             ; bw*16384")
    e("    s_add_u32 s12, s12, %d              ; LDS slot base (cycles)" % BBASE)
    e("    s_add_u32 s14, s12, %d              ; LDS wrap limit" % (3 * 32768))
    e("    s_mov_b32 s15, s12")
    e("    s_lshl_b32 s13, s11, 15")

    def b_issue():
        e("    s_mov_b32 m0, s12")
        for kbl in range(8):
            for nh in range(2):
                v = 6 if ((kbl >> 1) & 1) else 5
                if not (kbl == 0 and nh == 0):
                    e("    s_add_u32 m0, m0, 1024")
                    e("    s_add_u32 s13, s13, %d" % (256 if nh else 3840))
                else:
                    e("    s_nop 0")
                if not o.no_dma:
                    e("    buffer_load_dwordx4 v%d, s[48:51], s13 offen lds" % v)
        e("    s_add_u32 s13, s13, %d" % (65536 - 7 * 4096 - 256))
        e("    s_add_u32 s12, s12, 32768")
        e("    s_cmp_ge_u32 s12, s14")
        e("    s_cselect_b32 s12, s15, s12")

    for st in range(3):
        b_issue()
    e("    s_waitcnt vmcnt(32)")
    e("    s_barrier")
    e("    s_mov_b32 s40, 49")
    e("L_bloop:")
    e("    s_waitcnt vmcnt(16)")
    e("    s_barrier")
    b_issue()
    e("    s_sub_u32 s40, s40, 1")
    e("    s_cmp_lg_u32 s40, 0")
    e("    s_cbranch_scc1 L_bloop")
    e("    s_waitcnt vmcnt(16)")
    e("    s_barrier")
    e("    s_waitcnt vmcnt(0)")
    e("    s_barrier")
    e("    s_endpgm")

    e("L_aload:")
    e("    s_sub_u32 s11, s3, 4                ; aw")
    e("    s_mov_b32 s40, s16")
    e("    s_and_b32 s41, s17, 0xffff")
    e("    s_mov_b32 s42, %d" % (16384 * 104))
    e("    s_mov_b32 s43, 0x00020000")
    e("    s_mov_b32 s44, s18")
    e("    s_and_b32 s45, s19, 0xffff")
    e("    s_mov_b32 s46, %d" % (100000 * 256))
    e("    s_mov_b32 s47, 0x00020000")
    e("    s_lshl_b32 s12, s11, 6")
    e("    s_add_u32 s12, s12, s9")
    e("    v_lshrrev_b32 v1, 3, v0")
    e("    v_add_u32 v1, s12, v1")
    e("    v_mul_u32_u24 v6, 104, v1")
    e("    v_add_u32 v7, 3328, v6")
    e("    s_mov_b32 s13, 0")

    def idx_load():
        for i in range(8):
            e("    buffer_load_dwordx2 v[%d:%d], v%d, s[40:43], s13 offen offset:%d" % (
                16 + 2 * i, 17 + 2 * i, 6 if i < 4 else 7, (i & 3) * 832))
        e("    s_add_u32 s13, s13, 8")

    idx_load()
    e("    v_and_b32 v2, 7, v0")
    e("    v_lshrrev_b32 v3, 4, v0")
    e("    v_xor_b32 v2, v2, v3")
    e("    v_lshlrev_b32 v4, 4, v2             ; c_even")
    e("    v_xor_b32 v5, 64, v4                ; c_odd")
    e("    s_lshl_b32 s14, s5, 1")
    e("    s_add_u32 s14, s14, s11")
    e("    s_lshl_b32 s14, s14, 10             ; (2j+aw)*1024")
    e("    v_lshl_add_u32 v8, v0, 4, s14")
    e("    s_mov_b32 s15, %d                   ; W1 prefetch soffset" % (o.pd * 65536))
    e("    s_lshl_b32 s12, s11, 13")
    e("    s_mov_b32 s52, 128")
    e("    s_waitcnt vmcnt(0)")

    def a_addr():
        for i in range(8):
            e("    v_lshl_add_u32 v%d, v%d, 8, v%d" % (32 + i, 16 + 2 * i, 4 + (i & 1)))
            e("    v_lshl_add_u32 v%d, v%d, 8, v%d" % (40 + i, 17 + 2 * i, 4 + (i & 1)))

    def a_issue(u):
        vb = 32 if u < 2 else 40
        so = "s52" if (u & 1) else "0"
        e("    s_add_u32 m0, s12, %d" % (ABASE + u * 16384))
        e("    s_nop 0")
        for i in range(8):
            if i:
                e("    s_add_u32 m0, m0, 1024")
                e("    s_nop 0")
            if not o.no_dma:
                e("    buffer_load_dwordx4 v%d, s[44:47], %s offen %slds" % (vb + i, so, "nt " if o.a_nt else ""))
        if o.prefetch:
            e("    buffer_load_dwordx4 v[48:51], v8, s[48:51], s15 offen")
        else:
            e("    buffer_load_dwordx4 v[48:51], v8, s[48:51], s53 offen")
        e("    s_add_u32 s15, s15, 65536")

    e("    s_mov_b32 s53, 0x7f000000")
    a_addr()
    idx_load()
    for u in range(4):
        a_issue(u)
    e("    s_waitcnt vmcnt(28)")
    e("    s_barrier")
    e("    s_mov_b32 s54, 12")
    e("L_aloop:")
    for u in range(4):
        e("    s_waitcnt vmcnt(%d)" % (19 if u in (0, 3) else 27))
        e("    s_barrier")
        if u == 0:
            a_addr()
            idx_load()
        a_issue(u)
    e("    s_sub_u32 s54, s54, 1")
    e("    s_cmp_lg_u32 s54, 0")
    e("    s_cbranch_scc1 L_aloop")
    e("    s_waitcnt vmcnt(19)")
    e("    s_barrier")
    e("    s_waitcnt vmcnt(10)")
    e("    s_barrier")
    e("    s_waitcnt vmcnt(0)")
    e("    s_barrier")
    e("    s_endpgm")

    EX, WX, EY, WY = 16, 48, 64, 96
    W2R = 112
    ACC = 128

    def acc(mt, nt):
        return ACC + (mt * 4 + nt) * 4

    e("L_cons:")
    if o.prio_cons:
        e("    s_setprio %d" % o.prio_cons)
    e("    s_mov_b32 s40, s28                  ; b1 SRD s[40:43]")
    e("    s_and_b32 s41, s29, 0xffff")
    e("    s_mov_b32 s42, 1024")
    e("    s_mov_b32 s43, 0x00020000")
    e("    s_mov_b32 s44, s30                  ; W2 SRD s[44:47]")
    e("    s_and_b32 s45, s31, 0xffff")
    e("    s_mov_b32 s46, 1024")
    e("    s_mov_b32 s47, 0x00020000")
    e("    v_lshrrev_b32 v1, 4, v0             ; g")
    e("    v_and_b32 v2, 15, v0                ; c")
    e("    s_lshl_b32 s11, s3, 7               ; w*128")
    e("    s_add_u32 s11, s11, s10")
    e("    v_lshl_add_u32 v3, v1, 3, s11")
    for nt in range(4):
        e("    buffer_load_dwordx2 v[%d:%d], v3, s[40:43], 0 offen offset:%d" % (EY + 2 * nt, EY + 2 * nt + 1, nt * 32))
    for nt in range(4):
        e("    buffer_load_dwordx2 v[%d:%d], v3, s[44:47], 0 offen offset:%d" % (W2R + 2 * nt, W2R + 2 * nt + 1, nt * 32))
    e("    s_cmp_lg_u32 s3, 0")
    e("    s_cbranch_scc1 L_nowide1")
    e("    s_mov_b32 s48, s20")
    e("    s_and_b32 s49, s21, 0xffff")
    e("    s_mov_b32 s50, %d" % (16384 * 26))
    e("    s_mov_b32 s51, 0x00020000")
    e("    s_mul_i32 s12, s9, 26")
    e("    v_mul_u32_u24 v4, 52, v0")
    e("    v_add_u32 v4, s12, v4")
    e("    buffer_load_dwordx4 v[16:19], v4, s[48:51], 0 offen")
    e("    buffer_load_dwordx4 v[20:23], v4, s[48:51], 0 offen offset:16")
    e("    buffer_load_dwordx4 v[24:27], v4, s[48:51], 0 offen offset:32")
    e("    buffer_load_dword v28, v4, s[48:51], 0 offen offset:48")
    e("    s_load_dwordx4 s[56:59], s[22:23], 0")
    e("    s_load_dwordx2 s[60:61], s[22:23], 16")
    e("    s_load_dword s62, s[22:23], 24")
    e("    s_load_dword s63, s[24:25], 0       ; b_wide")
    e("    s_load_dword s64, s[32:33], 0       ; b2")
    e("L_nowide1:")
    e("    v_lshrrev_b32 v3, 1, v2")
    e("    v_xor_b32 v3, v1, v3")
    e("    v_lshlrev_b32 v3, 4, v3")
    e("    v_lshl_add_u32 v4, v2, 7, v3")
    e("    v_xor_b32 v5, 64, v4                ; A base s'=1")
    e("    v_lshlrev_b32 v6, 12, v1            ; g*4096")
    e("    v_lshrrev_b32 v3, 2, v2")
    e("    v_lshl_add_u32 v6, v3, 6, v6")
    e("    v_and_b32 v3, 3, v2")
    e("    v_lshl_add_u32 v6, v3, 3, v6")
    e("    s_lshl_b32 s11, s3, 9               ; w*512")
    e("    v_add_u32 v6, s11, v6")
    e("    v_and_b32 v3, 1, v1")
    e("    v_lshl_add_u32 v6, v3, 5, v6")
    e("    v_xor_b32 v7, 32, v6")
    e("    s_mov_b32 s12, %d                   ; A slot" % ABASE)
    e("    s_mov_b32 s13, %d                   ; B slot" % BBASE)
    e("    v_add_u32 v8, s12, v4")
    e("    v_add_u32 v9, s12, v5")
    e("    v_add_u32 v10, s13, v6")
    e("    v_add_u32 v11, s13, v7")
    e("    s_mov_b32 s14, 0xffff0000")
    e("    s_waitcnt vmcnt(0)")
    for mt in range(8):
        for nt in range(4):
            a = acc(mt, nt)
            e("    v_lshlrev_b32 v%d, 16, v%d" % (a, EY + 2 * nt))
            e("    v_and_b32 v%d, s14, v%d" % (a + 1, EY + 2 * nt))
            e("    v_lshlrev_b32 v%d, 16, v%d" % (a + 2, EY + 2 * nt + 1))
            e("    v_and_b32 v%d, s14, v%d" % (a + 3, EY + 2 * nt + 1))
    e("    s_cmp_lg_u32 s3, 0")
    e("    s_cbranch_scc1 L_nowide2")
    e("    s_waitcnt lgkmcnt(0)")
    for j in range(13):
        src = 56 + j // 2
        if j & 1:
            e("    s_and_b32 s%d, s%d, 0xffff0000" % (66 + j, src))
        else:
            e("    s_lshl_b32 s%d, s%d, 16" % (66 + j, src))
    e("    s_lshl_b32 s63, s63, 16")
    e("    s_lshl_b32 s64, s64, 16")
    e("    v_mov_b32 v120, 0")
    e("    v_mov_b32 v121, 0")
    for row in range(2):
        for j in range(13):
            h = row * 13 + j
            d = 16 + h // 2
            if h & 1:
                e("    v_and_b32 v30, s14, v%d" % d)
            else:
                e("    v_lshlrev_b32 v30, 16, v%d" % d)
            e("    v_fmac_f32 v%d, s%d, v30" % (120 + row, 66 + j))
    e("    v_cvt_pk_bf16_f32 v30, v120, v121")
    e("    v_lshlrev_b32 v120, 16, v30")
    e("    v_and_b32 v121, s14, v30")
    e("    v_add_f32 v120, s63, v120")
    e("    v_add_f32 v121, s63, v121")
    e("    v_cvt_pk_bf16_f32 v30, v120, v121")
    e("    v_lshlrev_b32 v120, 16, v30")
    e("    v_and_b32 v121, s14, v30")
    e("L_nowide2:")

    def reads(E, W, sp):
        r = []
        for nt in range(4):
            for jh in range(2):
                r.append("    ds_read_b64_tr_b16 v[%d:%d], v%d offset:%d" % (
                    W + 4 * nt + 2 * jh, W + 4 * nt + 2 * jh + 1, 10 + (nt & 1), sp * 16384 + jh * 2048 + (nt >> 1) * 256))
        for mt in range(8):
            r.append("    ds_read_b128 v[%d:%d], v%d offset:%d" % (E + 4 * mt, E + 4 * mt + 3, 8 + sp, mt * 2048))
        if o.no_dsread:
            return []
        return r

    def phase(E, W, rd, extra):
        k = 0
        rd = list(rd)
        extra = list(extra)
        for mt in range(8):
            for nt in range(4):
                a = acc(mt, nt)
                if not o.no_mfma:
                    e("    v_mfma_f32_16x16x32_bf16 v[%d:%d], v[%d:%d], v[%d:%d], v[%d:%d]" % (
                        a, a + 3, W + 4 * nt, W + 4 * nt + 3, E + 4 * mt, E + 4 * mt + 3, a, a + 3))
                if rd and (k % o.read_spread == 0):
                    e(rd.pop(0))
                elif not rd and extra:
                    e(extra.pop(0))
                k += 1
        for x in rd + extra:
            e(x)

    upd = ["    s_add_u32 s12, s12, 16384",
           "    s_and_b32 s12, s12, 0xffff",
           "    s_add_u32 s13, s13, 32768",
           "    s_cmp_ge_u32 s13, %d" % (BBASE + 3 * 32768),
           "    s_cselect_b32 s13, %d, s13" % BBASE,
           "    v_add_u32 v8, s12, v4",
           "    v_add_u32 v9, s12, v5",
           "    v_add_u32 v10, s13, v6",
           "    v_add_u32 v11, s13, v7"]
    e("    s_barrier                           ; B_0")
    for x in reads(EX, WX, 0):
        e(x)
    e("    s_mov_b32 s15, 51")
    e("L_cloop:")
    e("    s_waitcnt lgkmcnt(0)")
    phase(EX, WX, reads(EY, WY, 1), upd)
    e("    s_waitcnt lgkmcnt(0)")
    e("    s_barrier")
    phase(EY, WY, reads(EX, WX, 0), ["    s_sub_u32 s15, s15, 1", "    s_cmp_lg_u32 s15, 0"])
    e("    s_cbranch_scc1 L_cloop")
    e("    s_waitcnt lgkmcnt(0)")
    phase(EX, WX, reads(EY, WY, 1), [])
    e("    s_waitcnt lgkmcnt(0)")
    phase(EY, WY, [], [])
    PB = ABASE + 2 * 16384
    e("    s_nop 15")
    e("    v_lshlrev_b32 v3, 9, v1             ; g*512")
    e("    v_lshl_add_u32 v3, v2, 2, v3")
    e("    s_lshl_b32 s11, s3, 11              ; w*2048")
    e("    s_add_u32 s11, s11, %d" % PB)
    e("    v_add_u32 v3, s11, v3")
    for mt in range(8):
        s = 16 + mt
        first = True
        for nt in range(4):
            a = acc(mt, nt)
            for hh in range(2):
                t = 32 + (nt * 2 + hh)
                e("    v_cvt_pk_bf16_f32 v%d, v%d, v%d" % (t, a + 2 * hh, a + 2 * hh + 1))
                e("    v_pk_max_i16 v%d, v%d, 0" % (t, t))
        if mt:
            e("    ds_write_b32 v3, v%d offset:%d" % (s - 1, (mt - 1) * 64))
        for nt in range(4):
            for hh in range(2):
                t = 32 + (nt * 2 + hh)
                e("    v_dot2_f32_bf16 v%d, v%d, v%d, %s" % (s, t, W2R + 2 * nt + hh, "0" if first else "v%d" % s))
                first = False
    e("    s_nop 3")
    e("    ds_write_b32 v3, v%d offset:%d" % (16 + 7, 7 * 64))
    e("    s_waitcnt lgkmcnt(0)")
    e("    s_barrier")
    e("    s_cmp_lg_u32 s3, 0")
    e("    s_cbranch_scc1 L_end")
    e("    v_lshlrev_b32 v3, 3, v0")
    e("    v_add_u32 v3, %d, v3" % PB)
    for p in range(16):
        e("    ds_read_b64 v[%d:%d], v3 offset:%d" % (16 + 2 * p, 17 + 2 * p, p * 512))
    e("    s_mov_b32 s40, s38")
    e("    s_and_b32 s41, s39, 0xffff")
    e("    s_mov_b32 s42, 131072")
    e("    s_mov_b32 s43, 0x00020000")
    e("    s_mov_b32 s44, s36")
    e("    s_and_b32 s45, s37, 0xffff")
    e("    s_mov_b32 s46, 256")
    e("    s_mov_b32 s47, 0x00020000")
    e("    s_mov_b32 s48, s34")
    e("    s_and_b32 s49, s35, 0xffff")
    e("    s_mov_b32 s50, 32768")
    e("    s_mov_b32 s51, 0x00020000")
    e("    s_lshl_b32 s11, s8, 10              ; tile*1024")
    e("    s_add_u32 s12, s11, s10")
    e("    s_xor_b32 s13, s12, 512")
    e("    v_lshlrev_b32 v4, 3, v0")
    e("    s_waitcnt lgkmcnt(0)")
    for p in range(1, 16):
        e("    v_add_f32 v16, v16, v%d" % (16 + 2 * p))
        e("    v_add_f32 v17, v17, v%d" % (17 + 2 * p))
    e("    buffer_store_dwordx2 v[16:17], v4, s[40:43], s12 offen sc1")
    e("    s_lshr_b32 s11, s8, 1")
    e("    s_lshl_b32 s11, s11, 2")
    e("    s_and_b32 s15, s8, 1")
    e("    s_lshl_b32 s15, s15, 4")
    e("    s_lshl_b32 s55, 1, s15")
    e("    v_mov_b32 v5, s55")
    e("    v_mov_b32 v6, s11")
    e("    s_waitcnt vmcnt(0)")
    e("    s_mov_b64 s[52:53], exec")
    e("    s_mov_b64 exec, 1")
    e("    buffer_atomic_add v5, v6, s[44:47], 0 offen sc0")
    e("    s_waitcnt vmcnt(0)")
    e("    s_mov_b64 exec, s[52:53]")
    e("    v_readfirstlane_b32 s55, v5")
    e("    s_lshr_b32 s55, s55, s15")
    e("    s_and_b32 s55, s55, 0xffff")
    e("    s_cmp_eq_u32 s55, 0")
    e("    s_cbranch_scc1 L_end")
    e("    buffer_load_dwordx2 v[18:19], v4, s[40:43], s13 offen sc1")
    e("    s_lshl_b32 s11, s8, 8")
    e("    v_lshlrev_b32 v4, 2, v0")
    e("    s_mov_b32 s15, 0xbfb8aa3b           ; -log2(e)")
    e("    s_waitcnt vmcnt(0)")
    e("    v_add_f32 v16, v16, v18")
    e("    v_add_f32 v17, v17, v19")
    e("    v_cvt_pk_bf16_f32 v30, v16, v17")
    e("    v_lshlrev_b32 v16, 16, v30")
    e("    v_and_b32 v17, s14, v30")
    e("    v_add_f32 v16, s64, v16")
    e("    v_add_f32 v17, s64, v17")
    e("    v_cvt_pk_bf16_f32 v30, v16, v17")
    e("    v_lshlrev_b32 v16, 16, v30")
    e("    v_and_b32 v17, s14, v30")
    e("    v_add_f32 v16, v120, v16")
    e("    v_add_f32 v17, v121, v17")
    e("    v_cvt_pk_bf16_f32 v30, v16, v17")
    e("    v_lshlrev_b32 v16, 16, v30")
    e("    v_and_b32 v17, s14, v30")
    e("    v_mul_f32 v16, s15, v16")
    e("    v_mul_f32 v17, s15, v17")
    e("    v_exp_f32 v16, v16")
    e("    v_exp_f32 v17, v17")
    e("    s_nop 0")
    e("    v_add_f32 v16, 1.0, v16")
    e("    v_add_f32 v17, 1.0, v17")
    e("    v_rcp_f32 v16, v16")
    e("    v_rcp_f32 v17, v17")
    e("    s_nop 0")
    e("    v_cvt_pk_bf16_f32 v30, v16, v17")
    e("    buffer_store_dword v30, v4, s[48:51], s11 offen")
    e("L_end:")
    e("    s_endpgm")

    out = HEADER
    out += "; @launch grid=(256,1,1) block=(512,1,1) lds=163840\n"
    out += '.amdgcn_target "amdgcn-amd-amdhsa--gfx950"\n.text\n.globl %s\n.p2align 8\n.type %s,@function\n%s:\n' % (KN, KN, KN)
    out += "\n".join(L) + "\n"
    out += """.section .rodata,"a"
.p2align 6
.amdhsa_kernel %s
  .amdhsa_next_free_vgpr 256
  .amdhsa_next_free_sgpr 96
  .amdhsa_accum_offset 256
  .amdhsa_group_segment_fixed_size 0
  .amdhsa_kernarg_size 96
  .amdhsa_user_sgpr_count 2
  .amdhsa_user_sgpr_kernarg_segment_ptr 1
  .amdhsa_system_sgpr_workgroup_id_x 1
.end_amdhsa_kernel
""" % KN
    return out


if __name__ == "__main__":
    o = Opt()
    path = "standalone__deep_cross_wide_deep__recsys.s"
    for a in sys.argv[1:]:
        if a.startswith("-o"):
            path = a[2:]
        else:
            k, v = a.split("=")
            setattr(o, k, type(getattr(o, k))(int(v)) if not isinstance(getattr(o, k), str) else v)
    open(path, "w").write(gen(o))
    print("wrote", path)
```

```python
import sys

HEADER = open("standalone__deep_cross_wide_deep__recsys.s.ref").read().split("; Override launch")[0]
KN = "standalone__deep_cross_wide_deep__recsys_kernel"


class Opt:
    prio_cons = 2
    cpf = 2
    order = 1
    stamp = False
    prof = 0
    epi = 1
    nopf = 0
    noalt = 0
    bar_g = 40
    chain = 0
    swap = 0
    ntT = 0


def gen(o):
    L = []
    e = L.append
    BBASE = 65536
    PB = 0
    WB = 8192
    e("    s_cmp_ge_u32 s2, 256")
    e("    s_cbranch_scc1 L_end")
    e("    s_load_dwordx16 s[16:31], s[0:1], 0")
    e("    s_load_dwordx8 s[32:39], s[0:1], 64")
    if o.stamp:
        e("    s_memtime s[90:91]")
        e("    s_memrealtime s[100:101]")
    e("    v_lshrrev_b32 v1, 6, v0")
    e("    v_and_b32 v0, 63, v0")
    e("    v_readfirstlane_b32 s3, v1")
    e("    s_and_b32 s4, s2, 7")
    e("    s_lshr_b32 s5, s2, 3                ; j = 0..31")
    e("    s_and_b32 s6, s5, 1                 ; nhalf")
    e("    s_lshr_b32 s7, s5, 1")
    e("    s_lshl_b32 s8, s4, 4")
    e("    s_add_u32 s8, s8, s7                ; m tile 0..127")
    e("    s_lshl_b32 s9, s8, 7")
    e("    s_lshl_b32 s10, s6, 9")
    e("    v_lshrrev_b32 v1, 4, v0             ; lane>>4")
    e("    v_and_b32 v2, 15, v0                ; lane&15")
    e("    s_mov_b32 s50, %d" % (3328 * 1024))
    e("    s_mov_b32 s51, 0x00020000")
    e("    s_mov_b32 s43, 0x00020000")
    e("    s_mov_b32 s47, 0x00020000")
    e("    s_and_b32 s11, s3, 3")
    e("    s_lshl_b32 s58, s5, 11")
    e("    s_lshl_b32 s59, s11, 9")
    e("    s_add_u32 s58, s58, s59")
    e("    s_waitcnt lgkmcnt(0)")
    e("    s_mov_b32 s48, s26                  ; W1 SRD s[48:51]")
    e("    s_and_b32 s49, s27, 0xffff")
    e("    s_cmp_lt_u32 s3, 4")
    e("    s_cbranch_scc1 L_cons")

    e("    s_mov_b32 s40, s16")
    e("    s_and_b32 s41, s17, 0xffff")
    e("    s_mov_b32 s42, %d" % (16384 * 104))
    e("    v_and_b32 v3, 7, v0")
    e("    v_lshl_add_u32 v3, v3, 2, v1        ; 4*(j&7)+q")
    e("    s_lshl_b32 s12, s11, 5")
    e("    s_add_u32 s12, s12, s9")
    e("    v_add_u32 v3, s12, v3")
    e("    v_mul_u32_u24 v25, 104, v3")
    e("    buffer_load_dwordx4 v[64:67], v25, s[40:43], 0 offen")
    e("    v_bfe_u32 v3, v0, 2, 2              ; r")
    e("    v_and_b32 v4, 3, v0                 ; chunk")
    e("    v_lshlrev_b32 v7, 10, v3")
    e("    v_lshl_add_u32 v7, v1, 6, v7")
    e("    v_add_u32 v7, s10, v7")
    e("    v_lshl_add_u32 v5, v4, 4, v7        ; even")
    e("    v_xor_b32 v6, 32, v5                ; odd")
    e("    s_lshl_b32 s53, s11, 13")
    e("    s_add_u32 s12, s53, %d              ; B LDS slot base (cycles)" % BBASE)
    e("    s_add_u32 s15, s12, %d              ; wrap limit" % (3 * 32768))
    e("    s_mov_b32 s52, s12")
    e("    s_lshl_b32 s54, s11, 14")
    e("    s_mov_b32 s61, s54")
    e("    s_mov_b32 s60, 0")
    e("    s_mov_b32 s55, 1")
    e("    s_and_b32 s57, s7, 1")
    e("    s_sub_u32 s57, 2, s57")
    e("    s_mov_b32 s62, 0")
    e("    s_cmp_eq_u32 s11, 0")
    e("    s_cselect_b32 s73, 15, 0")
    e("    s_mov_b32 s63, 1")
    e("    s_mov_b32 s44, s18")
    e("    s_and_b32 s45, s19, 0xffff")
    e("    s_mov_b32 s46, %d" % (100000 * 256))
    e("    v_xor_b32 v3, v2, v1")
    e("    v_lshlrev_b32 v20, 4, v3")
    e("    v_xor_b32 v21, 64, v20")
    e("    v_xor_b32 v22, 128, v20")
    e("    v_xor_b32 v23, 192, v20")
    e("    s_add_u32 s58, s58, %d" % (65536 * (o.cpf + 2)))
    e("    s_branch L_B")

    def pf():
        for k in range(0 if o.nopf else 8):
            e("    s_buffer_load_dword s80, s[48:51], s58 offset:%d" % (k * 64))
        e("    s_add_u32 s58, s58, 65536")

    e("L_A:")
    e("    s_set_gpr_idx_on s60, gpr_idx(SRC1)")
    e("    s_nop 0")
    e("    v_lshlrev_b32 v24, 8, v64")
    e("    s_set_gpr_idx_off")
    e("    s_mov_b32 m0, s53")
    e("    s_xor_b32 s53, s53, 32768")
    for i in range(8):
        e("    v_add_u32_dpp v%d, v24, v%d row_newbcast:%d row_mask:0xf bank_mask:0xf" % (32 + i, 20 + (i & 3), i))
    if o.ntT:
        e("    s_cmp_gt_u32 s55, %d" % o.ntT)
        e("    s_cbranch_scc1 L_A2")
        for i in range(8):
            if i:
                e("    s_add_u32 m0, m0, 1024")
                e("    s_nop 0")
            e("    buffer_load_dwordx4 v%d, s[44:47], 0 offen nt lds" % (32 + i))
        e("    s_branch L_A3")
        e("L_A2:")
    for i in range(8):
        if i:
            e("    s_add_u32 m0, m0, 1024")
            e("    s_nop 0")
        e("    buffer_load_dwordx4 v%d, s[44:47], 0 offen lds" % (32 + i))
    e("L_A3:")
    e("    s_cmp_eq_u32 s63, 1")
    e("    s_cbranch_scc1 L_B")
    pf()
    e("    s_waitcnt vmcnt(8)")
    e("    s_barrier")
    e("L_B:")
    e("    s_mov_b32 m0, s12")
    e("    s_mov_b32 s13, s61")
    for kbl in range(4):
        for nh in range(2):
            v = 6 if ((kbl >> 1) & 1) else 5
            if not (kbl == 0 and nh == 0):
                e("    s_add_u32 m0, m0, 1024")
                e("    s_add_u32 s13, s13, %d" % (256 if nh else 3840))
            e("    buffer_load_dwordx4 v%d, s[48:51], s13 offen lds" % v)
    e("    s_add_u32 s61, s61, 65536")
    e("    s_add_u32 s12, s12, 32768")
    e("    s_cmp_ge_u32 s12, s15")
    e("    s_cselect_b32 s12, s52, s12")
    e("    s_xor_b32 s62, s62, 1")
    e("    s_cbranch_scc0 L_Bdone")
    e("    s_cmp_eq_u32 s63, 0")
    e("    s_cbranch_scc1 L_B")
    e("    s_cmp_eq_u32 s63, 2")
    e("    s_cbranch_scc1 L_idx")
    e("    s_waitcnt vmcnt(8)")
    e("    s_branch L_A")
    e("L_idx:")
    for k in range(1, 6):
        e("    buffer_load_dwordx4 v[%d:%d], v25, s[40:43], 0 offen offset:%d" % (64 + 4 * k, 67 + 4 * k, 16 * k))
    e("    buffer_load_dwordx2 v[88:89], v25, s[40:43], 0 offen offset:96")
    e("    s_cmp_lg_u32 s11, 0")
    e("    s_cbranch_scc1 L_B")
    e("    s_mov_b32 s40, s20")
    e("    s_and_b32 s41, s21, 0xffff")
    e("    s_mov_b32 s42, %d" % (16384 * 26))
    e("    s_mul_i32 s14, s9, 26")
    e("    v_mul_u32_u24 v4, 52, v0")
    e("    buffer_load_dwordx4 v[96:99], v4, s[40:43], s14 offen")
    e("    buffer_load_dwordx4 v[100:103], v4, s[40:43], s14 offen offset:16")
    e("    buffer_load_dwordx4 v[104:107], v4, s[40:43], s14 offen offset:32")
    e("    buffer_load_dword v108, v4, s[40:43], s14 offen offset:48")
    e("    s_load_dwordx4 s[64:67], s[22:23], 0")
    e("    s_load_dwordx2 s[68:69], s[22:23], 16")
    e("    s_load_dword s70, s[22:23], 24")
    e("    s_load_dword s71, s[24:25], 0       ; b_wide")
    e("    s_branch L_B")
    e("L_Bdone:")
    pf()
    e("    s_sub_u32 s60, s55, s57")
    if not o.noalt:
        e("    s_xor_b32 s60, s60, s6")
    e("    s_add_u32 s60, s60, s57")
    e("    s_min_i32 s60, s60, 25")
    e("    s_cmp_lt_u32 s55, s57")
    e("    s_cselect_b32 s60, s55, s60")
    e("    s_lshl_b32 s61, s60, 17")
    e("    s_add_u32 s61, s61, s54")
    e("    s_add_u32 s55, s55, 1")
    e("    s_lshl_b32 s63, s63, 1")
    e("    s_and_b32 s63, s63, 2")
    e("    s_waitcnt vmcnt(8)")
    e("    s_barrier")
    e("    s_cmp_eq_u32 s55, s73")
    e("    s_cbranch_scc1 L_wide")
    e("L_wret:")
    e("    s_cmp_lt_u32 s55, 27")
    e("    s_cbranch_scc1 L_A")
    e("    s_waitcnt vmcnt(0)")
    e("    s_barrier                           ; B_51")
    e("    v_lshlrev_b32 v3, 3, v0")
    e("    s_cmp_lg_u32 s11, 0")
    e("    s_cbranch_scc1 L_lend")
    e("    ds_write_b64 v3, v[40:41] offset:%d" % WB)
    e("L_lend:")
    e("    s_waitcnt lgkmcnt(0)")
    e("    s_endpgm")
    e("L_wide:")
    e("    s_waitcnt lgkmcnt(0)")
    e("    s_mov_b32 s14, 0xffff0000")
    e("    v_mov_b32 v40, 0")
    e("    v_mov_b32 v41, 0")
    for j in range(13):
        src = 64 + j // 2
        if j & 1:
            e("    s_and_b32 s72, s%d, s14" % src)
        else:
            e("    s_lshl_b32 s72, s%d, 16" % src)
        for row in range(2):
            h = row * 13 + j
            d = 96 + h // 2
            if h & 1:
                e("    v_and_b32 v30, s14, v%d" % d)
            else:
                e("    v_lshlrev_b32 v30, 16, v%d" % d)
            e("    v_fmac_f32 v%d, s72, v30" % (40 + row))
    e("    s_lshl_b32 s71, s71, 16")
    e("    v_cvt_pk_bf16_f32 v30, v40, v41")
    e("    v_lshlrev_b32 v40, 16, v30")
    e("    v_and_b32 v41, s14, v30")
    e("    v_add_f32 v40, s71, v40")
    e("    v_add_f32 v41, s71, v41")
    e("    v_cvt_pk_bf16_f32 v30, v40, v41")
    e("    v_lshlrev_b32 v40, 16, v30")
    e("    v_and_b32 v41, s14, v30")
    e("    s_branch L_wret")

    WS = (16, 48)
    ES = 80
    W2R = 112
    ACC = 128
    BT = 96

    def acc(mt, nt):
        return ACC + (mt * 4 + nt) * 4

    e("L_cons:")
    e("    s_mov_b32 s40, s28                  ; b1 SRD s[40:43]")
    e("    s_and_b32 s41, s29, 0xffff")
    e("    s_mov_b32 s42, 1024")
    e("    s_mov_b32 s44, s30                  ; W2 SRD s[44:47]")
    e("    s_and_b32 s45, s31, 0xffff")
    e("    s_mov_b32 s46, 1024")
    e("    s_lshl_b32 s11, s3, 7               ; w*128")
    e("    s_add_u32 s11, s11, s10")
    e("    v_lshl_add_u32 v3, v1, 3, s11")
    for nt in range(4):
        e("    buffer_load_dwordx2 v[%d:%d], v3, s[40:43], 0 offen offset:%d" % (BT + 2 * nt, BT + 2 * nt + 1, nt * 32))
    for nt in range(4):
        e("    buffer_load_dwordx2 v[%d:%d], v3, s[44:47], 0 offen offset:%d" % (W2R + 2 * nt, W2R + 2 * nt + 1, nt * 32))
    e("    s_load_dword s64, s[32:33], 0       ; b2")
    e("    s_add_u32 s58, s58, 131072")
    e("    s_mov_b32 s12, %d" % o.cpf)
    e("L_cpf:")
    pf()
    e("    s_sub_u32 s12, s12, 1")
    e("    s_cmp_lg_u32 s12, 0")
    e("    s_cbranch_scc1 L_cpf")
    if o.prio_cons:
        e("    s_setprio %d" % o.prio_cons)
    e("    v_xor_b32 v3, v1, v2")
    e("    v_lshlrev_b32 v3, 4, v3")
    e("    v_lshl_add_u32 v4, v2, 8, v3")
    e("    v_xor_b32 v5, 64, v4")
    e("    v_xor_b32 v6, 128, v4")
    e("    v_xor_b32 v7, 192, v4")
    e("    v_lshlrev_b32 v12, 12, v1           ; g*4096")
    e("    v_lshrrev_b32 v3, 2, v2")
    e("    v_lshl_add_u32 v12, v3, 6, v12")
    e("    v_and_b32 v3, 3, v2")
    e("    v_lshl_add_u32 v12, v3, 3, v12")
    e("    s_lshl_b32 s11, s3, 9               ; w*512")
    e("    v_add_u32 v12, s11, v12")
    e("    v_and_b32 v3, 1, v1")
    e("    v_lshl_add_u32 v12, v3, 5, v12")
    e("    v_xor_b32 v13, 32, v12")
    e("    s_mov_b32 s13, %d                   ; B slot" % BBASE)
    e("    v_add_u32 v10, s13, v12")
    e("    v_add_u32 v11, s13, v13")
    e("    s_mov_b32 s14, 0xffff0000")
    e("    s_mov_b32 s15, 0x8000")
    e("    s_waitcnt vmcnt(4)")
    e("L_ini:")
    e("    s_set_gpr_idx_on s12, gpr_idx(DST)")
    e("    s_nop 0")
    for nt in range(4):
        a = ACC + 4 * nt
        e("    v_lshlrev_b32 v%d, 16, v%d" % (a, BT + 2 * nt))
        e("    v_and_b32 v%d, s14, v%d" % (a + 1, BT + 2 * nt))
        e("    v_lshlrev_b32 v%d, 16, v%d" % (a + 2, BT + 2 * nt + 1))
        e("    v_and_b32 v%d, s14, v%d" % (a + 3, BT + 2 * nt + 1))
    e("    s_set_gpr_idx_off")
    e("    s_add_u32 s12, s12, 16")
    e("    s_cmp_lt_u32 s12, 128")
    e("    s_cbranch_scc1 L_ini")
    e("    s_mov_b32 s12, 0")
    e("    s_waitcnt vmcnt(0)")

    def wreads(W):
        r = []
        for nt in range(4):
            for k in range(2):
                for jh in range(2):
                    d = W + (nt * 2 + k) * 4 + 2 * jh
                    r.append((("W", nt, k), "    ds_read_b64_tr_b16 v[%d:%d], v%d offset:%d" % (
                        d, d + 1, 10 + (nt & 1), k * 16384 + jh * 2048 + (nt >> 1) * 256)))
        return r

    def ereads(h, mt):
        r = []
        for k in range(2):
            d = ES + (mt & 3) * 8 + 4 * k
            r.append((("E", mt, k), "    ds_read_b128 v[%d:%d], v%d offset:%d" % (d, d + 3, 4 + 2 * h + k, mt * 4096)))
        return r

    q = []

    def issue(item):
        q.append(item[0])
        e(item[1])

    def need(tags):
        last = -1
        for i, t in enumerate(q):
            if t in tags:
                last = i
        if last >= 0:
            n = len(q) - 1 - last
            e("    s_waitcnt lgkmcnt(%d)" % min(n, 15))
            del q[:last + 1]

    def stage(h, last=False, stream=None, tail=None):
        W = WS[h]
        Wn = WS[1 - h]
        fills = {}
        def add(g, x):
            fills.setdefault(g, []).append(x)
        if o.order == 1:
            for p in range(3):
                for i, it in enumerate(ereads(h, 2 * p + 2) + ereads(h, 2 * p + 3)):
                    add(16 * p + i, it)
        else:
            for mt in range(5):
                er = ereads(h, mt + 3)
                add(8 * mt, er[0])
                add(8 * mt + 1, er[1])
        if not last:
            upd = ["    s_add_u32 s12, s12, 1",
                   "    s_add_u32 s13, s13, 32768",
                   "    s_cmp_ge_u32 s13, %d" % (BBASE + 3 * 32768),
                   "    s_cselect_b32 s13, %d, s13" % BBASE,
                   "    v_add_u32 v10, s13, v12",
                   "    v_add_u32 v11, s13, v13"]
            for i, x in enumerate(upd):
                add(26 + i, x)
            add(36, "    v_xor_b32 v%d, s15, v%d" % (4 + 2 * h, 4 + 2 * h))
            add(37, "    v_xor_b32 v%d, s15, v%d" % (5 + 2 * h, 5 + 2 * h))
            nxt = []
            wr = wreads(Wn)
            e0 = [(("En",) + t[1:], x) for (t, x) in ereads(1 - h, 0)]
            e1 = [(("En",) + t[1:], x) for (t, x) in ereads(1 - h, 1)]
            e2 = [(("En",) + t[1:], x) for (t, x) in ereads(1 - h, 2)]
            wr = [(("Wn",) + t[1:], x) for (t, x) in wr]
            order_ = e0 + wr[:6] + wr[6:12] + e1 + e2 + wr[12:]
            gaps = list(range(40, 48)) + list(range(48, 56)) + [56, 57, 58, 59, 60, 61]
            if o.order == 1:
                order_ = wr[:8] + e0 + e1 + wr[8:]
                gaps = list(range(40, 60))
            for g, it in zip(gaps, order_):
                add(g, it)
            if tail:
                add(62, tail)
        pos = 0
        for g in range(64):
            mt = g >> 3
            j = g & 7
            nt = (j >> 1) if mt % 2 == 0 else 3 - (j >> 1)
            k = (j & 1) ^ ((j >> 1) & 1)
            if o.order == 1:
                p = g >> 4
                jj = g & 15
                jn = jj >> 2
                nt = jn if p % 2 == 0 else 3 - jn
                sub = jj & 3
                mt = 2 * p + ((sub >> 1) ^ (jn & 1))
                k = (sub & 1) ^ (sub >> 1)
                j = 0 if jj == 0 else 1
            if g == 40 and not last:
                need([t for t in q])
                e("    s_barrier")
            if j == 0:
                tags = [("E", mt, 0), ("E", mt, 1)]
                if o.order == 1:
                    tags += [("E", mt + 1, 0), ("E", mt + 1, 1)]
                if g == 0:
                    tags += [("W", n, kk) for n in range(4) for kk in range(2)]
                need(tags)
            a = acc(mt, nt)
            wv = W + (nt * 2 + k) * 4
            ev = ES + (mt & 3) * 8 + 4 * k
            e("    v_mfma_f32_16x16x32_bf16 v[%d:%d], v[%d:%d], v[%d:%d], v[%d:%d]" % (a, a + 3, wv, wv + 3, ev, ev + 3, a, a + 3))
            for x in fills.get(g, []):
                if isinstance(x, tuple):
                    issue(x)
                else:
                    e(x)
            if stream is not None:
                n = 0
                while n < (1 if g in fills else 2) and pos < len(stream):
                    m = tile_of(stream[pos])
                    if m is not None and g < (8 * m + 7 if o.order != 1 else 16 * (m >> 1) + 15) + 8:
                        break
                    e(stream[pos]); pos += 1; n += 1
        for i, t in enumerate(q):
            if t[0] == "En":
                q[i] = ("E",) + t[1:]
            elif t[0] == "Wn":
                q[i] = ("W",) + t[1:]
        return pos

    if o.stamp:
        e("    s_memtime s[92:93]")
    e("    s_barrier                           ; B_0")
    if o.stamp:
        e("    s_memtime s[94:95]")
    first = ereads(0, 0) + wreads(WS[0])[:12] + ereads(0, 1) + ereads(0, 2) + wreads(WS[0])[12:]
    if o.order == 1:
        first = wreads(WS[0])[:8] + ereads(0, 0) + ereads(0, 1) + wreads(WS[0])[8:]
    for it in first:
        issue(it)
    q0 = list(q)
    e("L_cloop:")

    def prof():
        if o.prof:
            e("    s_waitcnt lgkmcnt(0)")
            del q[:]
            e("    s_mov_b32 m0, s12")
            e("    s_nop 0")
            e("    v_writelane_b32 v122, s76, m0")
            e("    v_writelane_b32 v123, s78, m0")
            e("    s_memtime s[76:77]")
            e("    s_memrealtime s[78:79]")
            e("    s_waitcnt lgkmcnt(0)")
    prof()
    stage(0)
    prof()
    stage(1, tail="    s_cmp_lt_u32 s12, 50")
    assert o.prof or q == q0, (q, q0)
    e("    s_cbranch_scc1 L_cloop")
    prof()
    stage(0)
    e("    v_lshlrev_b32 v3, 9, v1             ; g*512")
    e("    v_lshl_add_u32 v3, v2, 2, v3")
    e("    s_lshl_b32 s11, s3, 11              ; w*2048")
    e("    v_add_u32 v3, s11, v3")

    def cvt(mt):
        r = []
        T = 16 + 8 * (mt & 1)
        for nt in range(4):
            a = acc(mt, nt)
            for hh in range(2):
                t = T + nt * 2 + hh
                r.append("    v_cvt_pk_bf16_f32 v%d, v%d, v%d" % (t, a + 2 * hh, a + 2 * hh + 1))
                r.append("    v_pk_max_i16 v%d, v%d, 0" % (t, t))
        return r

    def dots(mt):
        r = []
        T = 16 + 8 * (mt & 1)
        s = 32 + mt
        for k in range(8):
            r.append("    v_dot2_f32_bf16 v%d, v%d, v%d, %s" % (s, T + k, W2R + k, "0" if k == 0 else "v%d" % s))
        return r

    stream = list(cvt(0))
    for mt in range(1, 8):
        c = cvt(mt)
        d = dots(mt - 1)
        for k in range(8):
            stream += [c[2 * k], c[2 * k + 1], d[k]]
    stream += dots(7)
    stream.append("    s_nop 2")
    for mt in range(8):
        stream.append("    ds_write_b32 v3, v%d offset:%d" % (32 + mt, PB + mt * 64))
    pos = stage(1, last=True, stream=stream)
    e("    s_nop 7")
    for x in stream[pos:]:
        e(x)
    if o.stamp:
        e("    s_memtime s[96:97]")
    e("    s_waitcnt lgkmcnt(0)")
    e("    s_barrier")
    e("    s_cmp_lg_u32 s3, 0")
    e("    s_cbranch_scc1 L_end")
    e("    v_lshlrev_b32 v4, 3, v0")
    for p in range(16):
        e("    ds_read_b64 v[%d:%d], v4 offset:%d" % (16 + 2 * p, 17 + 2 * p, PB + p * 512))
    e("    ds_read_b64 v[120:121], v4 offset:%d" % WB)
    e("    s_mov_b32 s40, s38")
    e("    s_and_b32 s41, s39, 0xffff")
    e("    s_mov_b32 s42, %d" % (131072 + (65536 + 131072 if o.stamp else 0)))
    e("    s_mov_b32 s44, s36")
    e("    s_and_b32 s45, s37, 0xffff")
    e("    s_mov_b32 s46, 256")
    e("    s_mov_b32 s48, s34")
    e("    s_and_b32 s49, s35, 0xffff")
    e("    s_mov_b32 s50, 32768")
    e("    s_lshl_b32 s11, s8, 10              ; tile*1024")
    e("    s_add_u32 s12, s11, s10")
    e("    s_xor_b32 s13, s12, 512")
    e("    s_lshr_b32 s11, s8, 1")
    e("    s_lshl_b32 s11, s11, 2")
    e("    s_and_b32 s15, s8, 1")
    e("    s_lshl_b32 s15, s15, 4")
    e("    s_lshl_b32 s55, 1, s15")
    e("    v_mov_b32 v5, s55")
    e("    v_mov_b32 v6, s11")
    e("    s_lshl_b32 s64, s64, 16")
    e("    s_waitcnt lgkmcnt(0)")
    for st in (8, 4, 2, 1):
        for p in range(st):
            e("    v_add_f32 v%d, v%d, v%d" % (16 + 2 * p, 16 + 2 * p, 16 + 2 * (p + st)))
            e("    v_add_f32 v%d, v%d, v%d" % (17 + 2 * p, 17 + 2 * p, 17 + 2 * (p + st)))
    e("    buffer_store_dwordx2 v[16:17], v4, s[40:43], s12 offen sc1")
    e("    s_mov_b64 s[52:53], exec")
    e("    s_waitcnt vmcnt(0)")
    e("    s_mov_b64 exec, 1")
    e("    buffer_atomic_add v5, v6, s[44:47], 0 offen sc0")
    e("    s_waitcnt vmcnt(0)")
    e("    s_mov_b64 exec, s[52:53]")
    e("    v_readfirstlane_b32 s55, v5")
    e("    s_nop 1")
    if o.stamp:
        e("    s_memtime s[98:99]")
        e("    s_memrealtime s[82:83]")
        e("    s_waitcnt lgkmcnt(0)")
        e("    s_sub_u32 s92, s92, s90")
        e("    s_sub_u32 s94, s94, s90")
        e("    s_sub_u32 s96, s96, s90")
        e("    s_sub_u32 s98, s98, s90")
        e("    v_mov_b32 v40, s92")
        e("    v_mov_b32 v41, s94")
        e("    v_mov_b32 v42, s96")
        e("    v_mov_b32 v43, s98")
        e("    v_mov_b32 v48, 0")
        e("    v_mov_b32 v49, 0")
        e("    v_mov_b32 v50, s100")
        e("    v_mov_b32 v51, s82")
        e("    s_lshl_b32 s92, s2, 5")
        e("    s_add_u32 s92, s92, 131072")
        e("    v_mov_b32 v44, 0")
        e("    s_mov_b64 exec, 1")
        e("    buffer_store_dwordx4 v[40:43], v44, s[40:43], s92 offen")
        e("    buffer_store_dwordx4 v[48:51], v44, s[40:43], s92 offen offset:16")
        e("    s_mov_b64 exec, s[52:53]")
        if o.prof:
            e("    s_lshl_b32 s92, s2, 9")
            e("    s_add_u32 s92, s92, %d" % (131072 + 65536))
            e("    buffer_store_dwordx2 v[122:123], v4, s[40:43], s92 offen")
    e("    s_lshr_b32 s55, s55, s15")
    e("    s_and_b32 s55, s55, 0xffff")
    e("    s_cmp_eq_u32 s55, 0")
    e("    s_cbranch_scc1 L_end")
    e("    buffer_load_dwordx2 v[18:19], v4, s[40:43], s13 offen sc1")
    e("    s_lshl_b32 s11, s8, 8")
    e("    v_lshlrev_b32 v4, 2, v0")
    e("    s_mov_b32 s15, 0xbfb8aa3b           ; -log2(e)")
    e("    s_waitcnt vmcnt(0)")
    e("    v_add_f32 v16, v16, v18")
    e("    v_add_f32 v17, v17, v19")
    e("    v_cvt_pk_bf16_f32 v30, v16, v17")
    e("    v_lshlrev_b32 v16, 16, v30")
    e("    v_and_b32 v17, s14, v30")
    e("    v_add_f32 v16, s64, v16")
    e("    v_add_f32 v17, s64, v17")
    e("    v_cvt_pk_bf16_f32 v30, v16, v17")
    e("    v_lshlrev_b32 v16, 16, v30")
    e("    v_and_b32 v17, s14, v30")
    e("    v_add_f32 v16, v120, v16")
    e("    v_add_f32 v17, v121, v17")
    e("    v_cvt_pk_bf16_f32 v30, v16, v17")
    e("    v_lshlrev_b32 v16, 16, v30")
    e("    v_and_b32 v17, s14, v30")
    e("    v_mul_f32 v16, s15, v16")
    e("    v_mul_f32 v17, s15, v17")
    e("    v_exp_f32 v16, v16")
    e("    v_exp_f32 v17, v17")
    e("    s_nop 0")
    e("    v_add_f32 v16, 1.0, v16")
    e("    v_add_f32 v17, 1.0, v17")
    e("    v_rcp_f32 v16, v16")
    e("    v_rcp_f32 v17, v17")
    e("    s_nop 0")
    e("    v_cvt_pk_bf16_f32 v30, v16, v17")
    e("    buffer_store_dword v30, v4, s[48:51], s11 offen")
    e("L_end:")
    e("    s_endpgm")

    out = HEADER
    out += "; @launch grid=(256,1,1) block=(512,1,1) lds=163840\n"
    out += '.amdgcn_target "amdgcn-amd-amdhsa--gfx950"\n.text\n.globl %s\n.p2align 8\n.type %s,@function\n%s:\n' % (KN, KN, KN)
    out += "\n".join(L) + "\n"
    out += """.section .rodata,"a"
.p2align 6
.amdhsa_kernel %s
  .amdhsa_next_free_vgpr 256
  .amdhsa_next_free_sgpr 102
  .amdhsa_accum_offset 256
  .amdhsa_group_segment_fixed_size 0
  .amdhsa_kernarg_size 96
  .amdhsa_user_sgpr_count 2
  .amdhsa_user_sgpr_kernarg_segment_ptr 1
  .amdhsa_system_sgpr_workgroup_id_x 1
.end_amdhsa_kernel
""" % KN
    return out


def tile_of(x):
    import re
    if "v_cvt_pk" in x:
        r = int(re.findall(r"v(\d+)", x)[1])
        return (r - 128) // 16
    return None


if __name__ == "__main__":
    o = Opt()
    path = "standalone__deep_cross_wide_deep__recsys.s"
    for a in sys.argv[1:]:
        if a.startswith("-o"):
            path = a[2:]
        else:
            k, v = a.split("=")
            setattr(o, k, type(getattr(o, k))(int(v)) if not isinstance(getattr(o, k), str) else v)
    open(path, "w").write(gen(o))
    print("wrote", path)
```

```python
import sys

HEADER = open("standalone__deep_cross_wide_deep__recsys.s.ref").read().split("; Override launch")[0]
KN = "standalone__deep_cross_wide_deep__recsys_kernel"


class Opt:
    prio_cons = 2
    cpf = 2
    order = 1
    stamp = False
    prof = 0
    epi = 1
    nl = 4
    nopf = 0
    noalt = 0
    bar_g = 40
    chain = 0
    swap = 0
    ntT = 0


def gen(o):
    L = []
    e = L.append
    BBASE = 65536
    PB = 0
    WB = 8192
    e("    s_cmp_ge_u32 s2, 256")
    e("    s_cbranch_scc1 L_end")
    e("    s_load_dwordx16 s[16:31], s[0:1], 0")
    e("    s_load_dwordx8 s[32:39], s[0:1], 64")
    if o.stamp:
        e("    s_memtime s[90:91]")
        e("    s_memrealtime s[100:101]")
    e("    v_lshrrev_b32 v1, 6, v0")
    e("    v_and_b32 v0, 63, v0")
    e("    v_readfirstlane_b32 s3, v1")
    e("    s_and_b32 s4, s2, 7")
    e("    s_lshr_b32 s5, s2, 3                ; j = 0..31")
    e("    s_and_b32 s6, s5, 1                 ; nhalf")
    e("    s_lshr_b32 s7, s5, 1")
    e("    s_lshl_b32 s8, s4, 4")
    e("    s_add_u32 s8, s8, s7                ; m tile 0..127")
    e("    s_lshl_b32 s9, s8, 7")
    e("    s_lshl_b32 s10, s6, 9")
    e("    v_lshrrev_b32 v1, 4, v0             ; lane>>4")
    e("    v_and_b32 v2, 15, v0                ; lane&15")
    e("    s_mov_b32 s50, %d" % (3328 * 1024))
    e("    s_mov_b32 s51, 0x00020000")
    e("    s_mov_b32 s43, 0x00020000")
    e("    s_mov_b32 s47, 0x00020000")
    e("    s_and_b32 s11, s3, 3")
    e("    s_lshl_b32 s58, s5, 11")
    e("    s_lshl_b32 s59, s11, 9")
    e("    s_add_u32 s58, s58, s59")
    e("    s_waitcnt lgkmcnt(0)")
    e("    s_mov_b32 s48, s26                  ; W1 SRD s[48:51]")
    e("    s_and_b32 s49, s27, 0xffff")
    e("    s_cmp_lt_u32 s3, 4")
    e("    s_cbranch_scc1 L_cons")

    e("    s_mov_b32 s40, s16")
    e("    s_and_b32 s41, s17, 0xffff")
    e("    s_mov_b32 s42, %d" % (16384 * 104))
    NI = 32 // o.nl
    SH = 0 if o.nl == 4 else 1
    e("    v_and_b32 v3, %d, v0" % (NI - 1))
    e("    v_lshl_add_u32 v3, v3, 2, v1        ; 4*(j&(NI-1))+q")
    e("    s_lshl_b32 s12, s11, %d" % (5 + SH))
    e("    s_add_u32 s12, s12, s9")
    e("    v_add_u32 v3, s12, v3")
    e("    v_mul_u32_u24 v25, 104, v3")
    e("    buffer_load_dwordx4 v[64:67], v25, s[40:43], 0 offen")
    e("    v_bfe_u32 v3, v0, 2, 2              ; r")
    e("    v_and_b32 v4, 3, v0                 ; chunk")
    e("    v_lshlrev_b32 v7, 10, v3")
    e("    v_lshl_add_u32 v7, v1, 6, v7")
    e("    v_add_u32 v7, s10, v7")
    e("    v_lshl_add_u32 v5, v4, 4, v7        ; even")
    e("    v_xor_b32 v6, 32, v5                ; odd")
    e("    s_lshl_b32 s53, s11, %d             ; A LDS base of this wave (toggles)" % (13 + SH))
    e("    s_add_u32 s12, s53, %d              ; B LDS slot base (cycles)" % BBASE)
    e("    s_add_u32 s15, s12, %d              ; wrap limit" % (3 * 32768))
    e("    s_mov_b32 s52, s12")
    e("    s_lshl_b32 s54, s11, %d             ; W1 row offset of this wave" % (14 + SH))
    if o.nl == 2:
        e("    s_lshl_b32 s59, s11, 9")
        e("    s_add_u32 s58, s58, s59")
    e("    s_mov_b32 s61, s54")
    e("    s_mov_b32 s60, 0")
    e("    s_mov_b32 s55, 1")
    e("    s_and_b32 s57, s7, 1")
    e("    s_sub_u32 s57, 2, s57")
    e("    s_mov_b32 s62, 0")
    e("    s_cmp_eq_u32 s11, 0")
    e("    s_cselect_b32 s73, 15, 0")
    e("    s_mov_b32 s63, 1")
    e("    s_mov_b32 s44, s18")
    e("    s_and_b32 s45, s19, 0xffff")
    e("    s_mov_b32 s46, %d" % (100000 * 256))
    e("    v_xor_b32 v3, v2, v1")
    e("    v_lshlrev_b32 v20, 4, v3")
    e("    v_xor_b32 v21, 64, v20")
    e("    v_xor_b32 v22, 128, v20")
    e("    v_xor_b32 v23, 192, v20")
    e("    s_add_u32 s58, s58, %d" % (65536 * (o.cpf + 2)))
    e("    s_branch L_B")

    def pf(n=8):
        for k in range(0 if o.nopf else n):
            e("    s_buffer_load_dword s80, s[48:51], s58 offset:%d" % (k * 64))
        e("    s_add_u32 s58, s58, 65536")

    e("L_A:")
    e("    s_set_gpr_idx_on s60, gpr_idx(SRC1)")
    e("    s_nop 0")
    e("    v_lshlrev_b32 v24, 8, v64")
    e("    s_set_gpr_idx_off")
    e("    s_mov_b32 m0, s53")
    e("    s_xor_b32 s53, s53, 32768")
    for i in range(NI):
        e("    v_add_u32_dpp v%d, v24, v%d row_newbcast:%d row_mask:0xf bank_mask:0xf" % (32 + i, 20 + (i & 3), i))
    if o.ntT:
        e("    s_cmp_gt_u32 s55, %d" % o.ntT)
        e("    s_cbranch_scc1 L_A2")
        for i in range(8):
            if i:
                e("    s_add_u32 m0, m0, 1024")
                e("    s_nop 0")
            e("    buffer_load_dwordx4 v%d, s[44:47], 0 offen nt lds" % (32 + i))
        e("    s_branch L_A3")
        e("L_A2:")
    for i in range(NI):
        if i:
            e("    s_add_u32 m0, m0, 1024")
            e("    s_nop 0")
        e("    buffer_load_dwordx4 v%d, s[44:47], 0 offen lds" % (32 + i))
    e("L_A3:")
    e("    s_cmp_eq_u32 s63, 1")
    e("    s_cbranch_scc1 L_B")
    pf(NI)
    e("    s_waitcnt vmcnt(%d)" % NI)
    e("    s_barrier")
    e("L_B:")
    e("    s_mov_b32 m0, s12")
    e("    s_mov_b32 s13, s61")
    for kbl in range(NI // 2):
        for nh in range(2):
            v = 6 if ((kbl >> 1) & 1) else 5
            if not (kbl == 0 and nh == 0):
                e("    s_add_u32 m0, m0, 1024")
                e("    s_add_u32 s13, s13, %d" % (256 if nh else 3840))
            e("    buffer_load_dwordx4 v%d, s[48:51], s13 offen lds" % v)
    e("    s_add_u32 s61, s61, 65536")
    e("    s_add_u32 s12, s12, 32768")
    e("    s_cmp_ge_u32 s12, s15")
    e("    s_cselect_b32 s12, s52, s12")
    e("    s_xor_b32 s62, s62, 1")
    e("    s_cbranch_scc0 L_Bdone")
    e("    s_cmp_eq_u32 s63, 0")
    e("    s_cbranch_scc1 L_B")
    e("    s_cmp_eq_u32 s63, 2")
    e("    s_cbranch_scc1 L_idx")
    e("    s_waitcnt vmcnt(%d)" % NI)
    e("    s_branch L_A")
    e("L_idx:")
    for k in range(1, 6):
        e("    buffer_load_dwordx4 v[%d:%d], v25, s[40:43], 0 offen offset:%d" % (64 + 4 * k, 67 + 4 * k, 16 * k))
    e("    buffer_load_dwordx2 v[88:89], v25, s[40:43], 0 offen offset:96")
    e("    s_cmp_lg_u32 s11, 0")
    e("    s_cbranch_scc1 L_B")
    e("    s_mov_b32 s40, s20")
    e("    s_and_b32 s41, s21, 0xffff")
    e("    s_mov_b32 s42, %d" % (16384 * 26))
    e("    s_mul_i32 s14, s9, 26")
    e("    v_mul_u32_u24 v4, 52, v0")
    e("    buffer_load_dwordx4 v[96:99], v4, s[40:43], s14 offen")
    e("    buffer_load_dwordx4 v[100:103], v4, s[40:43], s14 offen offset:16")
    e("    buffer_load_dwordx4 v[104:107], v4, s[40:43], s14 offen offset:32")
    e("    buffer_load_dword v108, v4, s[40:43], s14 offen offset:48")
    e("    s_load_dwordx4 s[64:67], s[22:23], 0")
    e("    s_load_dwordx2 s[68:69], s[22:23], 16")
    e("    s_load_dword s70, s[22:23], 24")
    e("    s_load_dword s71, s[24:25], 0       ; b_wide")
    e("    s_branch L_B")
    e("L_Bdone:")
    pf(NI)
    e("    s_sub_u32 s60, s55, s57")
    if not o.noalt:
        e("    s_xor_b32 s60, s60, s6")
    e("    s_add_u32 s60, s60, s57")
    e("    s_min_i32 s60, s60, 25")
    e("    s_cmp_lt_u32 s55, s57")
    e("    s_cselect_b32 s60, s55, s60")
    e("    s_lshl_b32 s61, s60, 17")
    e("    s_add_u32 s61, s61, s54")
    e("    s_add_u32 s55, s55, 1")
    e("    s_lshl_b32 s63, s63, 1")
    e("    s_and_b32 s63, s63, 2")
    e("    s_waitcnt vmcnt(%d)" % NI)
    e("    s_barrier")
    e("    s_cmp_eq_u32 s55, s73")
    e("    s_cbranch_scc1 L_wide")
    e("L_wret:")
    e("    s_cmp_lt_u32 s55, 27")
    e("    s_cbranch_scc1 L_A")
    e("    s_waitcnt vmcnt(0)")
    e("    s_barrier                           ; B_51")
    e("    v_lshlrev_b32 v3, 3, v0")
    e("    s_cmp_lg_u32 s11, 0")
    e("    s_cbranch_scc1 L_lend")
    e("    ds_write_b64 v3, v[90:91] offset:%d" % WB)
    e("L_lend:")
    e("    s_waitcnt lgkmcnt(0)")
    e("    s_endpgm")
    e("L_wide:")
    e("    s_waitcnt lgkmcnt(0)")
    e("    s_mov_b32 s14, 0xffff0000")
    e("    v_mov_b32 v90, 0")
    e("    v_mov_b32 v91, 0")
    for j in range(13):
        src = 64 + j // 2
        if j & 1:
            e("    s_and_b32 s72, s%d, s14" % src)
        else:
            e("    s_lshl_b32 s72, s%d, 16" % src)
        for row in range(2):
            h = row * 13 + j
            d = 96 + h // 2
            if h & 1:
                e("    v_and_b32 v30, s14, v%d" % d)
            else:
                e("    v_lshlrev_b32 v30, 16, v%d" % d)
            e("    v_fmac_f32 v%d, s72, v30" % (90 + row))
    e("    s_lshl_b32 s71, s71, 16")
    e("    v_cvt_pk_bf16_f32 v30, v90, v91")
    e("    v_lshlrev_b32 v90, 16, v30")
    e("    v_and_b32 v91, s14, v30")
    e("    v_add_f32 v90, s71, v90")
    e("    v_add_f32 v91, s71, v91")
    e("    v_cvt_pk_bf16_f32 v30, v90, v91")
    e("    v_lshlrev_b32 v90, 16, v30")
    e("    v_and_b32 v91, s14, v30")
    e("    s_branch L_wret")

    WS = (16, 48)
    ES = 80
    W2R = 112
    ACC = 128
    BT = 96

    def acc(mt, nt):
        return ACC + (mt * 4 + nt) * 4

    e("L_cons:")
    e("    s_mov_b32 s40, s28                  ; b1 SRD s[40:43]")
    e("    s_and_b32 s41, s29, 0xffff")
    e("    s_mov_b32 s42, 1024")
    e("    s_mov_b32 s44, s30                  ; W2 SRD s[44:47]")
    e("    s_and_b32 s45, s31, 0xffff")
    e("    s_mov_b32 s46, 1024")
    e("    s_lshl_b32 s11, s3, 7               ; w*128")
    e("    s_add_u32 s11, s11, s10")
    e("    v_lshl_add_u32 v3, v1, 3, s11")
    for nt in range(4):
        e("    buffer_load_dwordx2 v[%d:%d], v3, s[40:43], 0 offen offset:%d" % (BT + 2 * nt, BT + 2 * nt + 1, nt * 32))
    for nt in range(4):
        e("    buffer_load_dwordx2 v[%d:%d], v3, s[44:47], 0 offen offset:%d" % (W2R + 2 * nt, W2R + 2 * nt + 1, nt * 32))
    e("    s_load_dword s64, s[32:33], 0       ; b2")
    e("    s_add_u32 s58, s58, 131072")
    e("    s_mov_b32 s12, %d" % o.cpf)
    e("L_cpf:")
    pf()
    e("    s_sub_u32 s12, s12, 1")
    e("    s_cmp_lg_u32 s12, 0")
    e("    s_cbranch_scc1 L_cpf")
    if o.prio_cons:
        e("    s_setprio %d" % o.prio_cons)
    e("    v_xor_b32 v3, v1, v2")
    e("    v_lshlrev_b32 v3, 4, v3")
    e("    v_lshl_add_u32 v4, v2, 8, v3")
    e("    v_xor_b32 v5, 64, v4")
    e("    v_xor_b32 v6, 128, v4")
    e("    v_xor_b32 v7, 192, v4")
    e("    v_lshlrev_b32 v12, 12, v1           ; g*4096")
    e("    v_lshrrev_b32 v3, 2, v2")
    e("    v_lshl_add_u32 v12, v3, 6, v12")
    e("    v_and_b32 v3, 3, v2")
    e("    v_lshl_add_u32 v12, v3, 3, v12")
    e("    s_lshl_b32 s11, s3, 9               ; w*512")
    e("    v_add_u32 v12, s11, v12")
    e("    v_and_b32 v3, 1, v1")
    e("    v_lshl_add_u32 v12, v3, 5, v12")
    e("    v_xor_b32 v13, 32, v12")
    e("    s_mov_b32 s13, %d                   ; B slot" % BBASE)
    e("    v_add_u32 v10, s13, v12")
    e("    v_add_u32 v11, s13, v13")
    e("    s_mov_b32 s14, 0xffff0000")
    e("    s_mov_b32 s15, 0x8000")
    e("    s_waitcnt vmcnt(4)")
    e("L_ini:")
    e("    s_set_gpr_idx_on s12, gpr_idx(DST)")
    e("    s_nop 0")
    for nt in range(4):
        a = ACC + 4 * nt
        e("    v_lshlrev_b32 v%d, 16, v%d" % (a, BT + 2 * nt))
        e("    v_and_b32 v%d, s14, v%d" % (a + 1, BT + 2 * nt))
        e("    v_lshlrev_b32 v%d, 16, v%d" % (a + 2, BT + 2 * nt + 1))
        e("    v_and_b32 v%d, s14, v%d" % (a + 3, BT + 2 * nt + 1))
    e("    s_set_gpr_idx_off")
    e("    s_add_u32 s12, s12, 16")
    e("    s_cmp_lt_u32 s12, 128")
    e("    s_cbranch_scc1 L_ini")
    e("    s_mov_b32 s12, 0")
    e("    s_waitcnt vmcnt(0)")

    def wreads(W):
        r = []
        for nt in range(4):
            for k in range(2):
                for jh in range(2):
                    d = W + (nt * 2 + k) * 4 + 2 * jh
                    r.append((("W", nt, k), "    ds_read_b64_tr_b16 v[%d:%d], v%d offset:%d" % (
                        d, d + 1, 10 + (nt & 1), k * 16384 + jh * 2048 + (nt >> 1) * 256)))
        return r

    def ereads(h, mt):
        r = []
        for k in range(2):
            d = ES + (mt & 3) * 8 + 4 * k
            r.append((("E", mt, k), "    ds_read_b128 v[%d:%d], v%d offset:%d" % (d, d + 3, 4 + 2 * h + k, mt * 4096)))
        return r

    q = []

    def issue(item):
        q.append(item[0])
        e(item[1])

    def need(tags):
        last = -1
        for i, t in enumerate(q):
            if t in tags:
                last = i
        if last >= 0:
            n = len(q) - 1 - last
            e("    s_waitcnt lgkmcnt(%d)" % min(n, 15))
            del q[:last + 1]

    def stage(h, last=False, stream=None, tail=None):
        W = WS[h]
        Wn = WS[1 - h]
        fills = {}
        def add(g, x):
            fills.setdefault(g, []).append(x)
        if o.order == 1:
            for p in range(3):
                for i, it in enumerate(ereads(h, 2 * p + 2) + ereads(h, 2 * p + 3)):
                    add(16 * p + i, it)
        else:
            for mt in range(5):
                er = ereads(h, mt + 3)
                add(8 * mt, er[0])
                add(8 * mt + 1, er[1])
        if not last:
            upd = ["    s_add_u32 s12, s12, 1",
                   "    s_add_u32 s13, s13, 32768",
                   "    s_cmp_ge_u32 s13, %d" % (BBASE + 3 * 32768),
                   "    s_cselect_b32 s13, %d, s13" % BBASE,
                   "    v_add_u32 v10, s13, v12",
                   "    v_add_u32 v11, s13, v13"]
            for i, x in enumerate(upd):
                add(26 + i, x)
            add(36, "    v_xor_b32 v%d, s15, v%d" % (4 + 2 * h, 4 + 2 * h))
            add(37, "    v_xor_b32 v%d, s15, v%d" % (5 + 2 * h, 5 + 2 * h))
            nxt = []
            wr = wreads(Wn)
            e0 = [(("En",) + t[1:], x) for (t, x) in ereads(1 - h, 0)]
            e1 = [(("En",) + t[1:], x) for (t, x) in ereads(1 - h, 1)]
            e2 = [(("En",) + t[1:], x) for (t, x) in ereads(1 - h, 2)]
            wr = [(("Wn",) + t[1:], x) for (t, x) in wr]
            order_ = e0 + wr[:6] + wr[6:12] + e1 + e2 + wr[12:]
            gaps = list(range(40, 48)) + list(range(48, 56)) + [56, 57, 58, 59, 60, 61]
            if o.order == 1:
                order_ = wr[:8] + e0 + e1 + wr[8:]
                gaps = list(range(40, 60))
            for g, it in zip(gaps, order_):
                add(g, it)
            if tail:
                add(62, tail)
        pos = 0
        for g in range(64):
            mt = g >> 3
            j = g & 7
            nt = (j >> 1) if mt % 2 == 0 else 3 - (j >> 1)
            k = (j & 1) ^ ((j >> 1) & 1)
            if o.order == 1:
                p = g >> 4
                jj = g & 15
                jn = jj >> 2
                nt = jn if p % 2 == 0 else 3 - jn
                sub = jj & 3
                mt = 2 * p + ((sub >> 1) ^ (jn & 1))
                k = (sub & 1) ^ (sub >> 1)
                j = 0 if jj == 0 else 1
            if g == 40 and not last:
                need([t for t in q])
                e("    s_barrier")
            if j == 0:
                tags = [("E", mt, 0), ("E", mt, 1)]
                if o.order == 1:
                    tags += [("E", mt + 1, 0), ("E", mt + 1, 1)]
                if g == 0:
                    tags += [("W", n, kk) for n in range(4) for kk in range(2)]
                need(tags)
            a = acc(mt, nt)
            wv = W + (nt * 2 + k) * 4
            ev = ES + (mt & 3) * 8 + 4 * k
            e("    v_mfma_f32_16x16x32_bf16 v[%d:%d], v[%d:%d], v[%d:%d], v[%d:%d]" % (a, a + 3, wv, wv + 3, ev, ev + 3, a, a + 3))
            for x in fills.get(g, []):
                if isinstance(x, tuple):
                    issue(x)
                else:
                    e(x)
            if stream is not None:
                n = 0
                while n < (1 if g in fills else 2) and pos < len(stream):
                    m = tile_of(stream[pos])
                    if m is not None and g < (8 * m + 7 if o.order != 1 else 16 * (m >> 1) + 15) + 8:
                        break
                    e(stream[pos]); pos += 1; n += 1
        for i, t in enumerate(q):
            if t[0] == "En":
                q[i] = ("E",) + t[1:]
            elif t[0] == "Wn":
                q[i] = ("W",) + t[1:]
        return pos

    if o.stamp:
        e("    s_memtime s[92:93]")
    e("    s_barrier                           ; B_0")
    if o.stamp:
        e("    s_memtime s[94:95]")
    first = ereads(0, 0) + wreads(WS[0])[:12] + ereads(0, 1) + ereads(0, 2) + wreads(WS[0])[12:]
    if o.order == 1:
        first = wreads(WS[0])[:8] + ereads(0, 0) + ereads(0, 1) + wreads(WS[0])[8:]
    for it in first:
        issue(it)
    q0 = list(q)
    e("L_cloop:")

    def prof():
        if o.prof:
            e("    s_waitcnt lgkmcnt(0)")
            del q[:]
            e("    s_mov_b32 m0, s12")
            e("    s_nop 0")
            e("    v_writelane_b32 v122, s76, m0")
            e("    v_writelane_b32 v123, s78, m0")
            e("    s_memtime s[76:77]")
            e("    s_memrealtime s[78:79]")
            e("    s_waitcnt lgkmcnt(0)")
    prof()
    stage(0)
    prof()
    stage(1, tail="    s_cmp_lt_u32 s12, 50")
    assert o.prof or q == q0, (q, q0)
    e("    s_cbranch_scc1 L_cloop")
    prof()
    stage(0)
    e("    v_lshlrev_b32 v3, 9, v1             ; g*512")
    e("    v_lshl_add_u32 v3, v2, 2, v3")
    e("    s_lshl_b32 s11, s3, 11              ; w*2048")
    e("    v_add_u32 v3, s11, v3")

    def cvt(mt):
        r = []
        T = 16 + 8 * (mt & 1)
        for nt in range(4):
            a = acc(mt, nt)
            for hh in range(2):
                t = T + nt * 2 + hh
                r.append("    v_cvt_pk_bf16_f32 v%d, v%d, v%d" % (t, a + 2 * hh, a + 2 * hh + 1))
                r.append("    v_pk_max_i16 v%d, v%d, 0" % (t, t))
        return r

    def dots(mt):
        r = []
        T = 16 + 8 * (mt & 1)
        s = 32 + mt
        for k in range(8):
            r.append("    v_dot2_f32_bf16 v%d, v%d, v%d, %s" % (s, T + k, W2R + k, "0" if k == 0 else "v%d" % s))
        return r

    stream = list(cvt(0))
    for mt in range(1, 8):
        c = cvt(mt)
        d = dots(mt - 1)
        for k in range(8):
            stream += [c[2 * k], c[2 * k + 1], d[k]]
    stream += dots(7)
    stream.append("    s_nop 2")
    for mt in range(8):
        stream.append("    ds_write_b32 v3, v%d offset:%d" % (32 + mt, PB + mt * 64))
    pos = stage(1, last=True, stream=stream)
    e("    s_nop 7")
    for x in stream[pos:]:
        e(x)
    if o.stamp:
        e("    s_memtime s[96:97]")
    e("    s_waitcnt lgkmcnt(0)")
    e("    s_barrier")
    e("    s_cmp_lg_u32 s3, 0")
    e("    s_cbranch_scc1 L_end")
    e("    v_lshlrev_b32 v4, 3, v0")
    for p in range(16):
        e("    ds_read_b64 v[%d:%d], v4 offset:%d" % (16 + 2 * p, 17 + 2 * p, PB + p * 512))
    e("    ds_read_b64 v[120:121], v4 offset:%d" % WB)
    e("    s_mov_b32 s40, s38")
    e("    s_and_b32 s41, s39, 0xffff")
    e("    s_mov_b32 s42, %d" % (131072 + (65536 + 131072 if o.stamp else 0)))
    e("    s_mov_b32 s44, s36")
    e("    s_and_b32 s45, s37, 0xffff")
    e("    s_mov_b32 s46, 256")
    e("    s_mov_b32 s48, s34")
    e("    s_and_b32 s49, s35, 0xffff")
    e("    s_mov_b32 s50, 32768")
    e("    s_lshl_b32 s11, s8, 10              ; tile*1024")
    e("    s_add_u32 s12, s11, s10")
    e("    s_xor_b32 s13, s12, 512")
    e("    s_lshr_b32 s11, s8, 1")
    e("    s_lshl_b32 s11, s11, 2")
    e("    s_and_b32 s15, s8, 1")
    e("    s_lshl_b32 s15, s15, 4")
    e("    s_lshl_b32 s55, 1, s15")
    e("    v_mov_b32 v5, s55")
    e("    v_mov_b32 v6, s11")
    e("    s_lshl_b32 s64, s64, 16")
    e("    s_waitcnt lgkmcnt(0)")
    for st in (8, 4, 2, 1):
        for p in range(st):
            e("    v_add_f32 v%d, v%d, v%d" % (16 + 2 * p, 16 + 2 * p, 16 + 2 * (p + st)))
            e("    v_add_f32 v%d, v%d, v%d" % (17 + 2 * p, 17 + 2 * p, 17 + 2 * (p + st)))
    e("    buffer_store_dwordx2 v[16:17], v4, s[40:43], s12 offen sc1")
    e("    s_mov_b64 s[52:53], exec")
    e("    s_waitcnt vmcnt(0)")
    e("    s_mov_b64 exec, 1")
    e("    buffer_atomic_add v5, v6, s[44:47], 0 offen sc0")
    e("    s_waitcnt vmcnt(0)")
    e("    s_mov_b64 exec, s[52:53]")
    e("    v_readfirstlane_b32 s55, v5")
    e("    s_nop 1")
    if o.stamp:
        e("    s_memtime s[98:99]")
        e("    s_memrealtime s[82:83]")
        e("    s_waitcnt lgkmcnt(0)")
        e("    s_sub_u32 s92, s92, s90")
        e("    s_sub_u32 s94, s94, s90")
        e("    s_sub_u32 s96, s96, s90")
        e("    s_sub_u32 s98, s98, s90")
        e("    v_mov_b32 v40, s92")
        e("    v_mov_b32 v41, s94")
        e("    v_mov_b32 v42, s96")
        e("    v_mov_b32 v43, s98")
        e("    v_mov_b32 v48, 0")
        e("    v_mov_b32 v49, 0")
        e("    v_mov_b32 v50, s100")
        e("    v_mov_b32 v51, s82")
        e("    s_lshl_b32 s92, s2, 5")
        e("    s_add_u32 s92, s92, 131072")
        e("    v_mov_b32 v44, 0")
        e("    s_mov_b64 exec, 1")
        e("    buffer_store_dwordx4 v[40:43], v44, s[40:43], s92 offen")
        e("    buffer_store_dwordx4 v[48:51], v44, s[40:43], s92 offen offset:16")
        e("    s_mov_b64 exec, s[52:53]")
        if o.prof:
            e("    s_lshl_b32 s92, s2, 9")
            e("    s_add_u32 s92, s92, %d" % (131072 + 65536))
            e("    buffer_store_dwordx2 v[122:123], v4, s[40:43], s92 offen")
    e("    s_lshr_b32 s55, s55, s15")
    e("    s_and_b32 s55, s55, 0xffff")
    e("    s_cmp_eq_u32 s55, 0")
    e("    s_cbranch_scc1 L_end")
    e("    buffer_load_dwordx2 v[18:19], v4, s[40:43], s13 offen sc1")
    e("    s_lshl_b32 s11, s8, 8")
    e("    v_lshlrev_b32 v4, 2, v0")
    e("    s_mov_b32 s15, 0xbfb8aa3b           ; -log2(e)")
    e("    s_waitcnt vmcnt(0)")
    e("    v_add_f32 v16, v16, v18")
    e("    v_add_f32 v17, v17, v19")
    e("    v_cvt_pk_bf16_f32 v30, v16, v17")
    e("    v_lshlrev_b32 v16, 16, v30")
    e("    v_and_b32 v17, s14, v30")
    e("    v_add_f32 v16, s64, v16")
    e("    v_add_f32 v17, s64, v17")
    e("    v_cvt_pk_bf16_f32 v30, v16, v17")
    e("    v_lshlrev_b32 v16, 16, v30")
    e("    v_and_b32 v17, s14, v30")
    e("    v_add_f32 v16, v120, v16")
    e("    v_add_f32 v17, v121, v17")
    e("    v_cvt_pk_bf16_f32 v30, v16, v17")
    e("    v_lshlrev_b32 v16, 16, v30")
    e("    v_and_b32 v17, s14, v30")
    e("    v_mul_f32 v16, s15, v16")
    e("    v_mul_f32 v17, s15, v17")
    e("    v_exp_f32 v16, v16")
    e("    v_exp_f32 v17, v17")
    e("    s_nop 0")
    e("    v_add_f32 v16, 1.0, v16")
    e("    v_add_f32 v17, 1.0, v17")
    e("    v_rcp_f32 v16, v16")
    e("    v_rcp_f32 v17, v17")
    e("    s_nop 0")
    e("    v_cvt_pk_bf16_f32 v30, v16, v17")
    e("    buffer_store_dword v30, v4, s[48:51], s11 offen")
    e("L_end:")
    e("    s_endpgm")

    out = HEADER
    out += "; @launch grid=(256,1,1) block=(%d,1,1) lds=163840\n" % (256 + 64 * o.nl)
    out += '.amdgcn_target "amdgcn-amd-amdhsa--gfx950"\n.text\n.globl %s\n.p2align 8\n.type %s,@function\n%s:\n' % (KN, KN, KN)
    out += "\n".join(L) + "\n"
    out += """.section .rodata,"a"
.p2align 6
.amdhsa_kernel %s
  .amdhsa_next_free_vgpr 256
  .amdhsa_next_free_sgpr 102
  .amdhsa_accum_offset 256
  .amdhsa_group_segment_fixed_size 0
  .amdhsa_kernarg_size 96
  .amdhsa_user_sgpr_count 2
  .amdhsa_user_sgpr_kernarg_segment_ptr 1
  .amdhsa_system_sgpr_workgroup_id_x 1
.end_amdhsa_kernel
""" % KN
    return out


def tile_of(x):
    import re
    if "v_cvt_pk" in x:
        r = int(re.findall(r"v(\d+)", x)[1])
        return (r - 128) // 16
    return None


if __name__ == "__main__":
    o = Opt()
    path = "standalone__deep_cross_wide_deep__recsys.s"
    for a in sys.argv[1:]:
        if a.startswith("-o"):
            path = a[2:]
        else:
            k, v = a.split("=")
            setattr(o, k, type(getattr(o, k))(int(v)) if not isinstance(getattr(o, k), str) else v)
    open(path, "w").write(gen(o))
    print("wrote", path)
```
